```python
import torch

def _softmax(x, axis=-1):
    return torch.softmax(x, dim=axis)
def _gelu(x):
    return torch.nn.functional.gelu(x, approximate="tanh")
def _silu(x):
    return torch.nn.functional.silu(x)
def _sigmoid(x):
    return torch.sigmoid(x)
def _layernorm(x, axis=-1, eps=1e-5):
    m = x.mean(dim=axis, keepdim=True)
    v = x.var(dim=axis, keepdim=True, unbiased=False)
    return (x - m) / torch.sqrt(v + eps)
def _scatter_add(tgt, idx, src, axis=0):
    return tgt.clone().index_add_(axis, idx, src)
def _segment_sum(src, seg, n):
    out = torch.zeros((n,) + src.shape[1:], dtype=src.dtype)
    return out.index_add_(0, seg, src)
def _pad(x, pw):
    flat = tuple(v for pair in reversed(pw) for v in pair)
    return torch.nn.functional.pad(x, flat)

kernel_name = 'standalone__gqa_block_cached__near_ridge'

def setup_inputs():

    _w = (lambda a: (lambda t: t.to(torch.bfloat16) if t.is_floating_point() else t)(torch.as_tensor(a)))
    B, Sq, D = 8, 64, 512
    Hq, Hkv, Sk, Dh = 32, 8, 512, 128
    assert Hq % Hkv == 0, (Hq, Hkv)
    return {
        "x": _w((lambda *s: torch.randn(*s, dtype=torch.bfloat16) * 0.8)(B, Sq, D)),
        "k_cache": _w((lambda *s: torch.randn(*s, dtype=torch.bfloat16) * 0.8)(B, Hkv, Sk, Dh)),
        "v_cache": _w((lambda *s: torch.randn(*s, dtype=torch.bfloat16) * 0.05)(B, Hkv, Sk, Dh)),
        "wq": _w((lambda *s: torch.randn(*s, dtype=torch.bfloat16) * 0.8)(D, Hq * Dh) * (D ** -0.5)),
        "wo": _w((lambda *s: torch.randn(*s, dtype=torch.bfloat16) * 0.05)(Hq * Dh, D) * ((Hq * Dh) ** -0.5)),
    }

def reference(x, k_cache, v_cache, wq, wo):
    B, Sq, D = x.shape
    Hq, Dh = 32, 128
    Hkv = k_cache.shape[1]
    rep = Hq // Hkv
    q = (lambda x, *d: x.permute(*d))((x @ wq).reshape(B, Sq, Hq, Dh), 0, 2, 1, 3)
    k = (lambda x, n, axis: torch.repeat_interleave(x, n, dim=axis))(k_cache, rep, axis=1)
    v = (lambda x, n, axis: torch.repeat_interleave(x, n, dim=axis))(v_cache, rep, axis=1)
    scores = torch.einsum("bhqd,bhkd->bhqk", q, k) * (Dh ** -0.5)
    p = _softmax(scores, axis=-1)
    o = torch.einsum("bhqk,bhkd->bhqd", p, v)
    return (lambda x, *d: x.permute(*d))(o, 0, 2, 1, 3).reshape(B, Sq, Hq * Dh) @ wo
```

```python
import re


def vr(lo, n=1, p='v'):
    if n == 1:
        return f"{p}{lo}"
    return f"{p}[{lo}:{lo + n - 1}]"


def rs(lo, n=1, p='v'):
    return {f"{p}{i}" for i in range(lo, lo + n)}


class R:
    def __init__(self, p, lo, n=1):
        self.p, self.lo, self.n = p, lo, n

    def __str__(self):
        return vr(self.lo, self.n, self.p)

    def set(self):
        return rs(self.lo, self.n, self.p)

    def sub(self, off, n=1):
        assert off + n <= self.n, (off, n, self.n)
        return R(self.p, self.lo + off, n)

    def __getitem__(self, i):
        return self.sub(i, 1)


def V(lo, n=1):
    return R('v', lo, n)


def A(lo, n=1):
    return R('a', lo, n)


def S(lo, n=1):
    return R('s', lo, n)


def _sets(lst):
    out = set()
    for x in lst:
        if isinstance(x, R):
            out |= x.set()
        elif isinstance(x, str):
            out.add(x)
        elif x is None:
            pass
        else:
            raise ValueError(x)
    return out


class Ins:
    __slots__ = ("text", "kind", "rd", "wr", "passes", "srcc", "wide_store", "states")

    def __init__(self, text, kind, rd, wr, passes=0, srcc=None, wide_store=None, states=1):
        self.text, self.kind, self.rd, self.wr = text, kind, rd, wr
        self.passes, self.srcc, self.wide_store, self.states = passes, srcc, wide_store, states


VALU_KINDS = ("valu", "trans", "permlane", "readlane")


class Asm:
    def __init__(self):
        self.ins = []
        self.vmq = []
        self.lgq = []
        self.capture = None

    def raw(self, text, kind="other", rd=(), wr=(), **kw):
        i = Ins(text, kind, _sets(rd), _sets(wr), **kw)
        self.ins.append(i)
        return i

    def label(self, name):
        self.raw(f"{name}:", "label", states=0)

    def comment(self, c):
        self.raw(f"; {c}", "label", states=0)

    def salu(self, op, dst, *srcs):
        rd = [s for s in srcs if isinstance(s, R)]
        wr = [dst] if isinstance(dst, (R, str)) else []
        txt = f"{op} " + ", ".join(str(x) for x in ((dst,) + srcs))
        return self.raw(txt, "salu", rd, wr)

    def nop(self, n):
        while n > 0:
            k = min(n, 16)
            self.raw(f"s_nop {k - 1}", "nop", states=k)
            n -= k

    def valu(self, op, dst, *srcs, kind="valu", extra_rd=(), extra_wr=()):
        rd = [s for s in srcs if isinstance(s, R)] + list(extra_rd)
        wr = [dst] + list(extra_wr)
        txt = f"{op} " + ", ".join(str(x) for x in ((dst,) + srcs))
        return self.raw(txt, kind, rd, wr)

    def valu_txt(self, txt, rd, wr, kind="valu"):
        return self.raw(txt, kind, rd, wr)

    def mfma32(self, d, a, b, c):
        rd = [a, b] + ([c] if isinstance(c, R) else [])
        i = self.raw(f"v_mfma_f32_32x32x16_bf16 {d}, {a}, {b}, {c}", "mfma", rd, [d], passes=8,
                     srcc=(c.set() if isinstance(c, R) else set()))
        return i

    def ds_read(self, op, dst, addr, off=0, tag=None):
        assert 0 <= off < 65536, off
        self.raw(f"{op} {dst}, {addr} offset:{off}", "ds_read", [addr], [dst])
        self.lgq.append(tag)

    def ds_write(self, op, addr, src, off=0, tag=None):
        assert 0 <= off < 65536, off
        self.raw(f"{op} {addr}, {src} offset:{off}", "ds_write", [addr, src], [])
        self.lgq.append(tag)

    def dma(self, voff, srd, soff, tag=None, off=0, aux=""):
        o = f" offset:{off}" if off else ""
        self.raw(f"buffer_load_dwordx4 {voff}, {srd}, {soff} offen{o}{aux} lds", "dma", [voff, srd, soff, "m0"], [])
        self.vmq.append(tag)

    def gload(self, op, dst, voff, srd, soff, off=0, tag=None, aux=""):
        assert 0 <= off < 4096
        o = f" offset:{off}" if off else ""
        self.raw(f"{op} {dst}, {voff}, {srd}, {soff} offen{o}{aux}", "vmem_load", [voff, srd, soff], [dst])
        self.vmq.append(tag)

    def gstore(self, op, src, voff, srd, soff, off=0, tag=None, aux=""):
        assert 0 <= off < 4096
        o = f" offset:{off}" if off else ""
        self.raw(f"{op} {src}, {voff}, {srd}, {soff} offen{o}{aux}", "vmem_store", [src, voff, srd, soff], [],
                 wide_store=(src.set() if src.n >= 3 else None))
        self.vmq.append(tag)

    def _need(self, q, tags):
        last = -1
        for idx, t in enumerate(q):
            if t in tags:
                last = idx
        return last

    def wait_vm(self, *tags, also_lg=None):
        last = self._need(self.vmq, set(tags))
        if last < 0:
            return
        n = len(self.vmq) - 1 - last
        n = min(n, 63)
        self.raw(f"s_waitcnt vmcnt({n})", "wait")
        self.vmq = self.vmq[len(self.vmq) - n:] if n else []

    def wait_lg(self, *tags):
        last = self._need(self.lgq, set(tags))
        if last < 0:
            return
        n = len(self.lgq) - 1 - last
        n = min(n, 15)
        self.raw(f"s_waitcnt lgkmcnt({n})", "wait")
        self.lgq = self.lgq[len(self.lgq) - n:] if n else []

    def wait_lg_all(self):
        if self.lgq:
            self.raw("s_waitcnt lgkmcnt(0)", "wait")
            self.lgq = []

    def wait_vm_all(self):
        if self.vmq:
            self.raw("s_waitcnt vmcnt(0)", "wait")
            self.vmq = []

    def barrier(self):
        self.raw("s_barrier", "other")

    def finalize(self):
        out = []
        for ins in self.ins:
            if ins.kind == "label":
                out.append(ins)
                continue
            need = 0
            dist = 0
            for prev in reversed(out):
                if prev.kind == "label":
                    continue
                if dist > 24:
                    break
                req = self._hazard(prev, ins)
                if req > dist:
                    need = max(need, req - dist)
                dist += prev.states
            while need > 0:
                k = min(need, 16)
                out.append(Ins(f"s_nop {k - 1}", "nop", set(), set(), states=k))
                need -= k
            out.append(ins)
        return out

    @staticmethod
    def _hazard(p, c):
        req = 0
        pv = p.kind in VALU_KINDS
        cv = c.kind in VALU_KINDS
        pw_v = {r for r in p.wr if r[0] in "va"}
        pw_s = {r for r in p.wr if r[0] == "s" or r in ("vcc",)}
        if pv:
            if c.kind == "mfma" and pw_v & c.rd:
                req = max(req, 2)
            if pw_s and c.kind in ("vmem_load", "vmem_store", "dma") and pw_s & c.rd:
                req = max(req, 5)
            if pw_s and cv and pw_s & c.rd:
                req = max(req, 2)
            if pw_s and c.kind == "salu" and pw_s & c.rd:
                req = max(req, 2)
            if c.kind == "permlane" and pw_v & (c.rd | c.wr):
                req = max(req, 2)
            if c.kind == "readlane" and pw_v & c.rd:
                req = max(req, 1)
            if p.kind == "trans" and cv and c.kind != "trans" and pw_v & c.rd:
                req = max(req, 1)
            if p.kind == "trans" and c.kind in ("ds_write", "vmem_store") and pw_v & c.rd:
                req = max(req, 1)
        if p.kind == "mfma":
            d = p.wr
            big = {8: 12, 4: 8}[p.passes]
            if cv and d & (c.rd | c.wr):
                req = max(req, big)
            if c.kind in ("ds_read", "ds_write", "vmem_load", "vmem_store", "dma") and d & (c.rd | c.wr):
                req = max(req, big)
            if c.kind == "mfma":
                ab = c.rd - c.srcc
                if d & ab:
                    req = max(req, big)
                if d & c.srcc and d != c.srcc:
                    req = max(req, big - 2)
                if d & c.wr and d != c.wr:
                    req = max(req, big)
            if cv and p.srcc & c.wr:
                req = max(req, {8: 7, 4: 3}[p.passes])
        if p.kind == "salu" and "m0" in p.wr and c.kind == "dma":
            req = max(req, 1)
        if p.wide_store and (p.wide_store & c.wr):
            req = max(req, 2)
        return req

    def text(self):
        lines = []
        for i in self.finalize():
            if i.kind == "label" and i.text.endswith(":"):
                lines.append(i.text)
            else:
                lines.append("    " + i.text)
        return "\n".join(lines) + "\n"
```

```python
import math
import struct
import sys

sys.path.insert(0, "work")
from asmlib import Asm, V, A, S, R

NAME = "standalone__gqa_block_cached__near_ridge"


def f32bits(x):
    return struct.unpack("<I", struct.pack("<f", x))[0]


STAGE = 25728
XPART = 8320
NSLOT = 5
WOB = NSLOT * STAGE
QXB = WOB + 4 * 4352
UNIT = 8704
LDS1 = 163840
assert QXB + 16384 <= LDS1
WS_O = 0
WS_WO = 4 << 20


def gen_k1(opts):
    a = Asm()
    sX, sK, sV, sWQ, sWO, sWS = S(16, 4), S(20, 4), S(24, 4), S(28, 4), S(32, 4), S(36, 4)
    sW, sB, sH, sHKV = S(40), S(41), S(42), S(43)
    sXo, sWo, sKV, sMX, sMW = S(44), S(45), S(46), S(47), S(48)
    sU = [S(49 + t) for t in range(4)]
    sT = [S(56 + i) for i in range(8)]
    sWOs, sWOm, sWOd, sOd = S(64), S(65), S(66), S(67)
    sC = S(68)
    sRU = [S(69 + i) for i in range(4)]
    sSU = [S(73 + i) for i in range(4)]
    sDT = [S(77 + i) for i in range(4)]
    tcnt = [0]

    def stmp():
        tcnt[0] += 1
        return sT[tcnt[0] % 8]

    vL = V(1)
    voff_x, voff_w, voff_k, vl16, voff_wo = V(2), V(3), V(4), V(5), V(6)
    xrd, wrd, xrd_s, wrd_s = V(7), V(8), V(9), V(10)
    krdA, krdB, krdA_t, krdB_t = V(11), V(12), V(13), V(14)
    vrd = V(15)
    vrd_t = [V(16 + i) for i in range(4)]
    word = V(20)
    vt = [V(21 + i) for i in range(11)]
    FB = 32
    mx = [V(48), V(49)]
    ls = [V(50), V(51)]
    et = [V(52 + i) for i in range(12)]
    SB = 64
    QF = 192

    def Sreg(T, qt):
        return V(SB + (T * 2 + qt) * 16, 16)

    def Qf(j, qt):
        return V(QF + (j * 2 + qt) * 4, 4)

    def Pf(T, qt, ks):
        return V(QF + ((T * 2 + qt) * 2 + ks) * 4, 4)

    def Oacc(i, qt):
        return A((i * 2 + qt) * 16, 16)

    a.raw("s_cmp_ge_u32 s2, 256", "salu", [S(2)], ["scc"])
    a.raw("s_cbranch_scc1 K1_END", "other")
    a.raw("s_load_dwordx8 s[4:11], s[0:1], 0", "other")
    a.raw("s_load_dwordx2 s[12:13], s[0:1], 32", "other")
    a.raw("s_load_dwordx2 s[14:15], s[0:1], 56", "other")
    a.valu("v_and_b32", vL, 63, V(0))
    a.valu("v_lshrrev_b32", vt[0], 6, V(0))
    a.valu("v_readfirstlane_b32", sW, vt[0], kind="readlane")
    a.salu("s_and_b32", sHKV, S(2), 7)
    a.salu("s_lshr_b32", sT[0], S(2), 3)
    a.salu("s_lshr_b32", sB, sT[0], 2)
    a.salu("s_and_b32", sT[1], sT[0], 3)
    a.salu("s_lshl_b32", sH, sHKV, 2)
    a.salu("s_add_u32", sH, sH, sT[1])
    a.valu("v_lshrrev_b32", vt[0], 3, vL)
    a.valu("v_lshlrev_b32", vt[0], 13, vt[0])
    a.valu("v_and_b32", vt[1], 7, vL)
    a.valu("v_lshl_add_u32", voff_x, vt[1], 4, vt[0])
    g16, i16 = vt[2], vt[3]
    a.valu("v_lshrrev_b32", g16, 4, vL)
    a.valu("v_and_b32", i16, 15, vL)
    a.valu("v_lshlrev_b32", vt[0], 15, g16)
    a.valu("v_lshl_add_u32", voff_w, i16, 4, vt[0])
    a.valu("v_lshlrev_b32", vt[0], 12, g16)
    a.valu("v_lshl_add_u32", voff_wo, i16, 4, vt[0])
    a.valu("v_and_b32", vt[0], 1, g16)
    a.valu("v_lshlrev_b32", vt[0], 3, vt[0])
    a.valu("v_xor_b32", vt[0], vt[0], i16)
    a.valu("v_lshlrev_b32", vt[1], 8, g16)
    a.valu("v_lshl_add_u32", voff_k, vt[0], 4, vt[1])
    a.valu("v_lshlrev_b32", vl16, 4, vL)
    n32, hh = vt[4], vt[5]
    a.valu("v_and_b32", n32, 31, vL)
    a.valu("v_lshrrev_b32", hh, 5, vL)
    a.valu("v_and_b32", vt[0], 7, n32)
    a.valu("v_mul_u32_u24", vt[0], 1040, vt[0])
    a.valu("v_lshrrev_b32", vt[1], 3, n32)
    a.valu("v_lshl_add_u32", vt[6], vt[1], 7, vt[0])
    a.valu("v_lshl_add_u32", xrd, hh, 4, vt[6])
    a.valu("v_lshl_add_u32", vt[6], vt[1], 8, vt[0])
    a.valu("v_lshl_add_u32", vt[6], hh, 4, vt[6])
    a.valu("v_and_b32", vt[7], 1, vt[1])
    a.valu("v_lshlrev_b32", vt[7], 7, vt[7])
    a.valu("v_add_u32", krdA, vt[6], vt[7])
    a.valu("v_sub_u32", krdB, vt[6], vt[7])
    dsub, rr, cc = vt[6], vt[7], vt[8]
    a.valu("v_and_b32", dsub, 1, g16)
    a.valu("v_lshrrev_b32", rr, 2, vL)
    a.valu("v_and_b32", rr, 3, rr)
    a.valu("v_and_b32", cc, 3, vL)
    a.valu("v_lshlrev_b32", vt[0], 5, dsub)
    a.valu("v_lshl_add_u32", vt[9], cc, 3, vt[0])
    a.valu("v_lshl_add_u32", vt[1], hh, 2, rr)
    a.valu("v_mul_u32_u24", vt[1], 1088, vt[1])
    a.valu("v_add_u32", vrd, vt[1], vt[9])
    a.valu("v_mul_u32_u24", vt[1], 1088, rr)
    a.valu("v_lshl_add_u32", vt[10], hh, 8, vt[1])
    a.valu("v_add_u32", word, vt[10], vt[9])
    a.valu("v_lshl_add_u32", vt[10], hh, 9, vt[1])
    a.valu("v_add_u32", vt[10], vt[10], vt[0])
    a.valu("v_and_b32", vt[1], 1, cc)
    a.valu("v_lshlrev_b32", vt[1], 4, vt[1])
    a.valu("v_lshrrev_b32", vt[9], 1, cc)
    a.valu("v_lshl_add_u32", vt[1], vt[9], 3, vt[1])
    a.valu("v_add_u32", wrd, vt[10], vt[1])

    a.salu("s_lshl_b32", sXo, sB, 16)
    a.salu("s_lshl_b32", sT[0], sW, 11)
    a.salu("s_add_u32", sXo, sXo, sT[0])
    a.salu("s_lshl_b32", sWo, sH, 8)
    a.salu("s_lshl_b32", sT[0], sW, 17)
    a.salu("s_add_u32", sWo, sWo, sT[0])
    a.salu("s_lshl_b32", sKV, sB, 3)
    a.salu("s_add_u32", sKV, sKV, sHKV)
    a.salu("s_lshl_b32", sKV, sKV, 17)
    a.salu("s_lshl_b32", sT[0], sW, 15)
    a.salu("s_add_u32", sKV, sKV, sT[0])
    a.salu("s_mul_i32", sMX, sW, 2080)
    a.salu("s_mul_i32", sMW, sW, 4352)
    a.salu("s_add_u32", sWOm, sMW, WOB)
    a.salu("s_add_u32", sMW, sMW, XPART)
    for t in range(4):
        a.salu("s_add_u32", sT[0], sW, 9 + 4 * t)
        a.salu("s_and_b32", sT[0], sT[0], 15)
        a.salu("s_mul_i32", sU[t], sT[0], UNIT)
    for i in range(4):
        a.salu("s_sub_u32", sT[1], sW, i)
        a.salu("s_and_b32", sT[1], sT[1], 3)
        a.salu("s_add_u32", sT[0], sT[1], 9 + 4 * i)
        a.salu("s_and_b32", sT[0], sT[0], 15)
        a.salu("s_mul_i32", sRU[i], sT[0], UNIT)
        a.salu("s_add_u32", sT[0], sT[1], 9)
        a.salu("s_and_b32", sT[0], sT[0], 15)
        a.salu("s_mul_i32", sSU[i], sT[0], UNIT)
        a.salu("s_add_u32", sT[0], sW, i)
        a.salu("s_and_b32", sT[0], sT[0], 3)
        a.salu("s_lshl_b32", sDT[i], sT[0], 6)
    a.salu("s_lshl_b32", sWOs, S(2), 14)
    a.salu("s_lshl_b32", sT[0], sW, 8)
    a.salu("s_add_u32", sWOs, sWOs, sT[0])
    a.salu("s_lshl_b32", sWOd, sW, 10)
    a.salu("s_add_u32", sWOd, sWOd, S(2))
    a.salu("s_lshl_b32", sWOd, sWOd, 10)
    a.salu("s_add_u32", sWOd, sWOd, WS_WO)
    a.salu("s_lshl_b32", sOd, sB, 9)
    a.salu("s_lshl_b32", sT[0], sH, 3)
    a.salu("s_add_u32", sOd, sOd, sT[0])
    a.salu("s_lshl_b32", sT[0], sW, 1)
    a.salu("s_add_u32", sOd, sOd, sT[0])
    a.salu("s_lshl_b32", sOd, sOd, 10)
    if WS_O:
        a.salu("s_add_u32", sOd, sOd, WS_O)
    cval = (128 ** -0.5) * math.log2(math.e)
    a.salu("s_mov_b32", sC, hex(f32bits(cval)))
    a.salu("s_lshl_b32", sT[0], sW, 6)
    a.valu("v_add_u32", wrd, sT[0], wrd)
    a.valu("v_add_u32", word, sWOm, word)

    a.raw("s_waitcnt lgkmcnt(0)", "wait")
    for srd, ptr, nbytes in ((sX, 4, 524288), (sK, 6, 8388608), (sV, 8, 8388608), (sWQ, 10, 4194304),
                             (sWO, 12, 4194304), (sWS, 14, 8 << 20)):
        a.salu("s_mov_b32", srd[0], S(ptr))
        a.salu("s_and_b32", srd[1], S(ptr + 1), "0xffff")
        a.salu("s_mov_b32", srd[2], nbytes)
        a.salu("s_mov_b32", srd[3], "0x00020000")

    def issue_stage(s):
        base = (s % NSLOT) * STAGE
        for tt in range(2):
            t = stmp()
            a.salu("s_add_u32", "m0", sMX, base + tt * 1040)
            a.salu("s_add_u32", t, sXo, tt * 1024 + s * 128)
            a.dma(voff_x, sX, t, tag=("st", s))
        for t4 in range(4):
            t = stmp()
            a.salu("s_add_u32", "m0", sMW, base + t4 * 1088)
            a.salu("s_add_u32", t, sWo, (64 * s + t4) * 8192)
            a.dma(voff_w, sWQ, t, tag=("st", s))

    def issue_kv(T, isv):
        for t8 in range(8):
            t = stmp()
            a.salu("s_add_u32", "m0", sU[T], t8 * (1088 if isv else 1040))
            a.salu("s_add_u32", t, sKV, T * 8192 + t8 * 1024)
            if isv:
                a.dma(vl16, sV, t, tag=("v", T))
            else:
                a.dma(voff_k, sK, t, tag=("k", T))

    for t4 in range(4):
        t = stmp()
        a.salu("s_add_u32", "m0", sWOm, t4 * 1088)
        a.salu("s_add_u32", t, sWOs, t4 * 1024)
        a.dma(voff_wo, sWO, t, tag="wo")
    for s in range(NSLOT):
        issue_stage(s)
    a.wait_vm("wo")
    for ntl in range(4):
        fr = V(SB + ntl * 4, 4)
        a.ds_read("ds_read_b64_tr_b16", fr.sub(0, 2), word, ntl * 64, tag=("wof", ntl))
        a.ds_read("ds_read_b64_tr_b16", fr.sub(2, 2), word, 512 + ntl * 64, tag=("wof", ntl))
    for ntl in range(4):
        fr = V(SB + ntl * 4, 4)
        a.wait_lg(("wof", ntl))
        t = stmp()
        a.salu("s_add_u32", t, sWOd, ntl * 262144)
        a.gstore("buffer_store_dwordx4", fr, vl16, sWS, t, tag="wost", aux=opts.get("wo_aux", " sc1"))

    Qacc = [V(SB + 96, 16), V(SB + 112, 16)]
    NB = 3
    DIST = 2

    def qbuf(n):
        return V(SB + 16 + (n % NB) * 12, 12)

    def q_loads(n):
        s, ks = divmod(n, 4)
        base = (s % NSLOT) * STAGE
        if ks == 0:
            a.wait_lg_all()
            a.wait_vm(("st", s))
            a.barrier()
            a.valu("v_add_u32", xrd_s, base, xrd)
            a.valu("v_add_u32", wrd_s, base + XPART, wrd)
        buf = qbuf(n)
        a.ds_read("ds_read_b64_tr_b16", buf.sub(0, 2), wrd_s, ks * 4352, tag=("q", n))
        a.ds_read("ds_read_b64_tr_b16", buf.sub(2, 2), wrd_s, ks * 4352 + 256, tag=("q", n))
        a.ds_read("ds_read_b128", buf.sub(4, 4), xrd_s, ks * 32, tag=("q", n))
        a.ds_read("ds_read_b128", buf.sub(8, 4), xrd_s, 512 + ks * 32, tag=("q", n))
        if ks == 0:
            if s in (1, 2, 3):
                issue_stage(s + 4)
            elif s in (5, 6, 7):
                issue_kv(s - 5, False)

    for n in range(DIST):
        q_loads(n)
    for n in range(32):
        if n + DIST < 32:
            q_loads(n + DIST)
        a.wait_lg(("q", n))
        buf = qbuf(n)
        for qt in range(2):
            a.mfma32(Qacc[qt], buf.sub(0, 4), buf.sub(4 + 4 * qt, 4), Qacc[qt] if n else 0)

    qp = V(SB, 16)
    for qt in range(2):
        for jj in range(2):
            for p in range(4):
                a.valu("v_cvt_pk_bf16_f32", qp.sub((qt * 2 + jj) * 4 + p), Qacc[qt].sub(jj * 8 + 2 * p),
                       Qacc[qt].sub(jj * 8 + 2 * p + 1))
    a.salu("s_lshl_b32", sT[0], sW, 12)
    a.salu("s_add_u32", sT[0], sT[0], QXB)
    a.valu("v_add_u32", vt[0], sT[0], vl16)
    for qt in range(2):
        for jj in range(2):
            a.ds_write("ds_write_b128", vt[0], qp.sub((qt * 2 + jj) * 4, 4), (jj * 2 + qt) * 1024, tag="qx")
    a.wait_lg_all()
    a.barrier()
    issue_kv(3, False)
    a.valu("v_add_u32", vt[0], QXB, vl16)
    for j in range(8):
        for qt in range(2):
            a.ds_read("ds_read_b128", Qf(j, qt), vt[0], (j * 2 + qt) * 1024, tag=("qf", j))

    KNB = 4
    KD = 3

    def kbuf(n):
        return V(FB + (n % KNB) * 4, 4)

    def k_loads(n):
        T, j = divmod(n, 8)
        if j == 0:
            a.wait_vm(("k", T))
            a.valu("v_add_u32", krdA_t, sU[T], krdA)
            a.valu("v_add_u32", krdB_t, sU[T], krdB)
        a.ds_read("ds_read_b128", kbuf(n), krdA_t if j < 4 else krdB_t, j * 32, tag=("kf", n))

    def max_ops(T):
        ops = []
        for qt in range(2):
            s = Sreg(T, qt)
            if T == 0:
                ops.append(lambda s=s, qt=qt: a.valu("v_max3_f32", mx[qt], s[0], s[1], s[2]))
                idx = list(range(3, 16))
            else:
                idx = list(range(16))
            while idx:
                if len(idx) >= 2:
                    i0, i1 = idx[0], idx[1]
                    idx = idx[2:]
                    ops.append(lambda s=s, qt=qt, i0=i0, i1=i1: a.valu("v_max3_f32", mx[qt], mx[qt], s[i0], s[i1]))
                else:
                    i0 = idx[0]
                    idx = []
                    ops.append(lambda s=s, qt=qt, i0=i0: a.valu("v_max_f32", mx[qt], mx[qt], s[i0]))
        return ops

    for n in range(KD):
        k_loads(n)
    fill = []
    for n in range(32):
        T, j = divmod(n, 8)
        if n + KD < 32:
            k_loads(n + KD)
        a.wait_lg(("kf", n), ("qf", j))
        if j == 7:
            issue_kv(T, True)
        if j == 2 and T > 0:
            fill = max_ops(T - 1)
        for qt in range(2):
            a.mfma32(Sreg(T, qt), kbuf(n), Qf(j, qt), Sreg(T, qt) if j else 0)
            for _ in range(2):
                if fill:
                    fill.pop(0)()
    while fill:
        fill.pop(0)()
    for op in max_ops(3):
        op()
    for qt in range(2):
        a.valu("v_mov_b32", et[qt], mx[qt])
    for qt in range(2):
        a.valu("v_permlane32_swap_b32", mx[qt], et[qt], kind="permlane", extra_rd=[mx[qt]], extra_wr=[et[qt]])
    for qt in range(2):
        a.valu("v_max_f32", mx[qt], mx[qt], et[qt])
    for qt in range(2):
        a.valu("v_mul_f32", mx[qt], sC, mx[qt])

    def exp_ops(T):
        ops = []
        for qt in range(2):
            s = Sreg(T, qt)
            for ks in range(2):
                p = Pf(T, qt, ks)
                for half in range(2):
                    e = [s[ks * 8 + half * 4 + k] for k in range(4)]
                    for k in range(4):
                        ops.append(lambda e=e, k=k, qt=qt: a.valu_txt(
                            f"v_fma_f32 {e[k]}, {e[k]}, {sC}, -{mx[qt]}", [e[k], sC, mx[qt]], [e[k]]))
                    for k in range(4):
                        ops.append(lambda e=e, k=k: a.valu("v_exp_f32", e[k], e[k], kind="trans"))
                    for k in range(4):
                        first = (T == 0 and ks == 0 and half == 0 and k == 0)
                        if first:
                            ops.append(lambda e=e, k=k, qt=qt: a.valu("v_mov_b32", ls[qt], e[k]))
                        else:
                            ops.append(lambda e=e, k=k, qt=qt: a.valu("v_add_f32", ls[qt], ls[qt], e[k]))
                    for k in range(2):
                        ops.append(lambda e=e, k=k, p=p, half=half: a.valu(
                            "v_cvt_pk_bf16_f32", p[half * 2 + k], e[2 * k], e[2 * k + 1]))
        return ops

    VNB = 4
    VD = 3

    def vbuf(n):
        return V(FB + (n % VNB) * 4, 4)

    def v_loads(n):
        T, r = divmod(n, 8)
        ks, i = divmod(r, 4)
        if r == 0:
            a.wait_vm(("v", T))
            for ii in range(4):
                t = stmp()
                a.salu("s_add_u32", t, sU[T], sDT[ii])
                a.valu("v_add_u32", vrd_t[ii], t, vrd)
        b = vbuf(n)
        a.ds_read("ds_read_b64_tr_b16", b.sub(0, 2), vrd_t[i], (2 * ks) * 256, tag=("vf", n))
        a.ds_read("ds_read_b64_tr_b16", b.sub(2, 2), vrd_t[i], (2 * ks + 1) * 256, tag=("vf", n))

    for op in exp_ops(0):
        op()
    for n in range(VD):
        v_loads(n)
    fill = []
    for n in range(32):
        T, r = divmod(n, 8)
        ks, i = divmod(r, 4)
        if r == 0:
            while fill:
                fill.pop(0)()
            fill = exp_ops(T + 1) if T < 3 else []
        if n + VD < 32:
            v_loads(n + VD)
        a.wait_lg(("vf", n))
        for qt in range(2):
            first = (T == 0 and ks == 0)
            a.mfma32(Oacc(i, qt), vbuf(n), Pf(T, qt, ks), 0 if first else Oacc(i, qt))
            for _ in range(7):
                if fill:
                    fill.pop(0)()

    for qt in range(2):
        a.valu("v_mov_b32", et[qt], ls[qt])
    for qt in range(2):
        a.valu("v_permlane32_swap_b32", ls[qt], et[qt], kind="permlane", extra_rd=[ls[qt]], extra_wr=[et[qt]])
    for qt in range(2):
        a.valu("v_add_f32", ls[qt], ls[qt], et[qt])
    a.valu("v_and_b32", vt[0], 31, vL)
    a.valu("v_lshlrev_b32", vt[0], 3, vt[0])
    a.valu("v_add_u32", vt[1], sU[0], vt[0])
    for qt in range(2):
        a.valu("v_mov_b32", et[2 + 2 * qt], mx[qt])
        a.valu("v_mov_b32", et[3 + 2 * qt], ls[qt])
    for qt in range(2):
        a.ds_write("ds_write_b64", vt[1], V(et[2 + 2 * qt].lo, 2), qt * 256, tag="stat")
    for i in range(1, 4):
        a.valu("v_add_u32", vt[1 + i], sU[i], vl16)
        for qt in range(2):
            for g in range(4):
                a.ds_write("ds_write_b128", vt[1 + i], Oacc(i, qt).sub(4 * g, 4), (qt * 4 + g) * 1024, tag="part")
    own = V(SB, 32)
    for qt in range(2):
        for r in range(16):
            a.valu("v_accvgpr_read_b32", own[qt * 16 + r], Oacc(0, qt)[r])
    a.wait_lg_all()
    a.barrier()
    st = V(SB + 32, 16)
    for i in range(1, 4):
        a.valu("v_add_u32", vt[1], sSU[i], vt[0])
        for qt in range(2):
            a.ds_read("ds_read_b64", st.sub(((i - 1) * 2 + qt) * 2, 2), vt[1], qt * 256, tag="rst")
    pr = [V(SB + 48 + (i - 1) * 32, 32) if i < 3 else V(QF, 32) for i in range(1, 4)]
    for i in range(1, 4):
        a.valu("v_add_u32", vt[1 + i], sRU[i], vl16)
        for qt in range(2):
            for g in range(4):
                a.ds_read("ds_read_b128", pr[i - 1].sub(qt * 16 + 4 * g, 4), vt[1 + i], (qt * 4 + g) * 1024,
                          tag=("rp", i))
    a.wait_lg("rst")
    fM = [et[0], et[1]]
    fs = [[et[2 + 2 * i + qt] for qt in range(2)] for i in range(4)]
    for qt in range(2):
        m1, m2, m3 = (st[(k * 2 + qt) * 2] for k in range(3))
        a.valu("v_max3_f32", fM[qt], mx[qt], m1, m2)
        a.valu("v_max_f32", fM[qt], fM[qt], m3)
    for qt in range(2):
        a.valu("v_sub_f32", fs[0][qt], mx[qt], fM[qt])
        for i in range(1, 4):
            a.valu("v_sub_f32", fs[i][qt], st[((i - 1) * 2 + qt) * 2], fM[qt])
    for qt in range(2):
        for i in range(4):
            a.valu("v_exp_f32", fs[i][qt], fs[i][qt], kind="trans")
    Lt = [et[10], et[11]]
    for qt in range(2):
        a.valu("v_mul_f32", Lt[qt], fs[0][qt], ls[qt])
        for i in range(1, 4):
            a.valu("v_fmac_f32", Lt[qt], fs[i][qt], st[((i - 1) * 2 + qt) * 2 + 1], extra_rd=[Lt[qt]])
    for qt in range(2):
        a.valu("v_rcp_f32", Lt[qt], Lt[qt], kind="trans")
    for qt in range(2):
        for i in range(4):
            a.valu("v_mul_f32", fs[i][qt], fs[i][qt], Lt[qt])
    for qt in range(2):
        for r in range(16):
            a.valu("v_mul_f32", own[qt * 16 + r], own[qt * 16 + r], fs[0][qt])
    for i in range(1, 4):
        a.wait_lg(("rp", i))
        for qt in range(2):
            for r in range(16):
                a.valu("v_fmac_f32", own[qt * 16 + r], pr[i - 1][qt * 16 + r], fs[i][qt],
                       extra_rd=[own[qt * 16 + r]])
    ob = V(SB + 32, 16)
    for qt in range(2):
        for ks in range(2):
            for p in range(4):
                a.valu("v_cvt_pk_bf16_f32", ob[(qt * 2 + ks) * 4 + p], own[qt * 16 + ks * 8 + 2 * p],
                       own[qt * 16 + ks * 8 + 2 * p + 1])
    for qt in range(2):
        for ks in range(2):
            t = stmp()
            a.salu("s_add_u32", t, sOd, qt * 262144 + ks * 1024)
            a.gstore("buffer_store_dwordx4", ob.sub((qt * 2 + ks) * 4, 4), vl16, sWS, t, tag="ost",
                     aux=opts.get("o_aux", ""))
    a.label("K1_END")
    a.raw("s_endpgm", "other")
    return a.text()


def gen_k2(opts):
    a = Asm()
    sWS, sOUT = S(16, 4), S(20, 4)
    sW, sRT, sNT = S(24), S(25), S(26)
    sA, sBo = S(27), S(28)
    sT = [S(32 + i) for i in range(8)]
    vL, vl16 = V(1), V(2)
    acc = V(4, 16)
    D = 16
    NKS = 32
    LB = 32

    def fb(n):
        return V(LB + (n % D) * 8, 8)

    a.raw("s_cmp_ge_u32 s2, 256", "salu", [S(2)], ["scc"])
    a.raw("s_cbranch_scc1 K2_END", "other")
    a.raw("s_load_dwordx2 s[4:5], s[0:1], 40", "other")
    a.raw("s_load_dwordx2 s[6:7], s[0:1], 56", "other")
    a.valu("v_and_b32", vL, 63, V(0))
    a.valu("v_lshrrev_b32", V(3), 6, V(0))
    a.valu("v_readfirstlane_b32", sW, V(3), kind="readlane")
    a.valu("v_lshlrev_b32", vl16, 4, vL)
    a.salu("s_and_b32", sT[0], S(2), 7)
    a.salu("s_lshr_b32", sT[1], S(2), 3)
    a.salu("s_lshr_b32", sRT, sT[0], 1)
    a.salu("s_lshl_b32", sRT, sRT, 2)
    a.salu("s_and_b32", sT[2], sT[1], 3)
    a.salu("s_add_u32", sRT, sRT, sT[2])
    a.salu("s_and_b32", sNT, sT[0], 1)
    a.salu("s_lshl_b32", sNT, sNT, 3)
    a.salu("s_lshr_b32", sT[2], sT[1], 2)
    a.salu("s_add_u32", sNT, sNT, sT[2])
    a.salu("s_lshl_b32", sT[0], sW, 15)
    a.salu("s_lshl_b32", sA, sNT, 18)
    a.salu("s_add_u32", sA, sA, sT[0])
    a.salu("s_add_u32", sA, sA, WS_WO)
    a.salu("s_lshl_b32", sBo, sRT, 18)
    a.salu("s_add_u32", sBo, sBo, sT[0])
    if WS_O:
        a.salu("s_add_u32", sBo, sBo, WS_O)
    a.raw("s_waitcnt lgkmcnt(0)", "wait")
    for srd, ptr, nbytes in ((sOUT, 4, 524288), (sWS, 6, 8 << 20)):
        a.salu("s_mov_b32", srd[0], S(ptr))
        a.salu("s_and_b32", srd[1], S(ptr + 1), "0xffff")
        a.salu("s_mov_b32", srd[2], nbytes)
        a.salu("s_mov_b32", srd[3], "0x00020000")

    def loads(n):
        if n % 4 == 0 and n:
            a.salu("s_add_u32", sA, sA, 4096)
            a.salu("s_add_u32", sBo, sBo, 4096)
        b = fb(n)
        a.gload("buffer_load_dwordx4", b.sub(0, 4), vl16, sWS, sA, (n % 4) * 1024, tag=("f", n))
        a.gload("buffer_load_dwordx4", b.sub(4, 4), vl16, sWS, sBo, (n % 4) * 1024, tag=("f", n))

    for n in range(D):
        loads(n)
    for n in range(NKS):
        a.wait_vm(("f", n))
        b = fb(n)
        a.mfma32(acc, b.sub(0, 4), b.sub(4, 4), acc if n else 0)
        if n + D < NKS:
            loads(n + D)
    a.salu("s_lshl_b32", sT[0], sW, 12)
    a.valu("v_add_u32", V(3), sT[0], vl16)
    for g in range(4):
        a.ds_write("ds_write_b128", V(3), acc.sub(4 * g, 4), g * 1024, tag="p")
    a.wait_lg_all()
    a.barrier()
    a.raw("s_cmp_ge_u32 s24, 4", "salu", [sW], ["scc"])
    a.raw("s_cbranch_scc1 K2_END", "other")
    a.salu("s_lshl_b32", sT[0], sW, 10)
    a.valu("v_add_u32", V(3), sT[0], vl16)
    for w in range(8):
        a.ds_read("ds_read_b128", V(LB + 4 * w, 4), V(3), w * 4096, tag=("r", w))
    a.wait_lg(("r", 1))
    for k in range(4):
        a.valu("v_add_f32", acc[k], V(LB + k), V(LB + 4 + k))
    for w in range(2, 8):
        a.wait_lg(("r", w))
        for k in range(4):
            a.valu("v_add_f32", acc[k], acc[k], V(LB + 4 * w + k))
    a.valu("v_cvt_pk_bf16_f32", acc[4], acc[0], acc[1])
    a.valu("v_cvt_pk_bf16_f32", acc[5], acc[2], acc[3])
    a.valu("v_and_b32", V(20), 31, vL)
    a.valu("v_lshlrev_b32", V(20), 10, V(20))
    a.valu("v_lshrrev_b32", V(21), 5, vL)
    a.valu("v_lshl_add_u32", V(20), V(21), 3, V(20))
    a.salu("s_lshl_b32", sT[0], sRT, 15)
    a.salu("s_lshl_b32", sT[1], sNT, 6)
    a.salu("s_add_u32", sT[0], sT[0], sT[1])
    a.salu("s_lshl_b32", sT[1], sW, 4)
    a.salu("s_add_u32", sT[0], sT[0], sT[1])
    a.gstore("buffer_store_dwordx2", acc.sub(4, 2), V(20), sOUT, sT[0], tag="o")
    a.label("K2_END")
    a.raw("s_endpgm", "other")
    return a.text()


HEADER = """; Kernarg layout for this problem (64 bytes, ptrs only, base s[0:1]):
; @launch kernel=gqa_attn_kernel grid=(256,1,1) block=(256,1,1) lds=163840
; @launch kernel=gqa_oproj_kernel grid=(256,1,1) block=(512,1,1) lds=32768
.amdgcn_target "amdgcn-amd-amdhsa--gfx950"
.text
"""


def kernel_block(name, body):
    return f""".globl {name}
.p2align 8
.type {name},@function
{name}:
{body}"""


def desc(name, vgpr, accum, sgpr):
    return f""".amdhsa_kernel {name}
  .amdhsa_next_free_vgpr {vgpr}
  .amdhsa_next_free_sgpr {sgpr}
  .amdhsa_accum_offset {accum}
  .amdhsa_group_segment_fixed_size 0
  .amdhsa_kernarg_size 64
  .amdhsa_user_sgpr_count 2
  .amdhsa_user_sgpr_kernarg_segment_ptr 1
  .amdhsa_system_sgpr_workgroup_id_x 1
.end_amdhsa_kernel
"""


def main(out, opts=None):
    opts = opts or {}
    txt = HEADER
    txt += kernel_block("gqa_attn_kernel", gen_k1(opts))
    txt += kernel_block("gqa_oproj_kernel", gen_k2(opts))
    txt += '.section .rodata,"a"\n.p2align 6\n'
    txt += desc("gqa_attn_kernel", 384, 256, 96)
    txt += ".p2align 6\n"
    txt += desc("gqa_oproj_kernel", 160, 160, 48)
    open(out, "w").write(txt)


if __name__ == "__main__":
    main(sys.argv[1] if len(sys.argv) > 1 else f"cdna_kernels/{NAME}.s")
```
